```python
import torch

def _softmax(x, axis=-1):
    return torch.softmax(x, dim=axis)
def _gelu(x):
    return torch.nn.functional.gelu(x, approximate="tanh")
def _silu(x):
    return torch.nn.functional.silu(x)
def _sigmoid(x):
    return torch.sigmoid(x)
def _layernorm(x, axis=-1, eps=1e-5):
    m = x.mean(dim=axis, keepdim=True)
    v = x.var(dim=axis, keepdim=True, unbiased=False)
    return (x - m) / torch.sqrt(v + eps)
def _scatter_add(tgt, idx, src, axis=0):
    return tgt.clone().index_add_(axis, idx, src)
def _segment_sum(src, seg, n):
    out = torch.zeros((n,) + src.shape[1:], dtype=src.dtype)
    return out.index_add_(0, seg, src)
def _pad(x, pw):
    flat = tuple(v for pair in reversed(pw) for v in pair)
    return torch.nn.functional.pad(x, flat)

kernel_name = 'sequential_preLN__spectral_fnet__dense_activation_squared_relu__prompt'

def setup_inputs():

    _w = (lambda a: (lambda t: t.to(torch.bfloat16) if t.is_floating_point() else t)(torch.as_tensor(a)))
    def _A_setup():
        B, S, D = 1, 2048, 640
        ns = torch.arange(S)[:, None] * torch.arange(S)[None, :]
        nd = torch.arange(D)[:, None] * torch.arange(D)[None, :]
        Ws_re = torch.cos(-2.0 * torch.pi * ns / S).to(float)
        Ws_im = torch.sin(-2.0 * torch.pi * ns / S).to(float)
        Wd_re = torch.cos(-2.0 * torch.pi * nd / D).to(float)
        Wd_im = torch.sin(-2.0 * torch.pi * nd / D).to(float)
        return {
            "x": _w((lambda *s: torch.randn(*s, dtype=torch.bfloat16) * 0.05)(B, S, D)),
            "dft_seq_re": _w(Ws_re),
            "dft_seq_im": _w(Ws_im),
            "dft_hid_re": _w(Wd_re),
            "dft_hid_im": _w(Wd_im),
        }
    _A_in = _A_setup()

    def _B_setup():
        B, S, D, F = 1, 2048, 640, 1728
        return {
            "x": _w((lambda *s: torch.randn(*s, dtype=torch.bfloat16) * 0.05)(B, S, D)),
            "w1": _w((lambda *s: torch.randn(*s, dtype=torch.bfloat16) * 0.2)(D, F)),
            "b1": _w((lambda *s: torch.randn(*s, dtype=torch.bfloat16) * 0.2)(F)),
            "w2": _w((lambda *s: torch.randn(*s, dtype=torch.bfloat16) * 0.2)(F, D)),
            "b2": _w((lambda *s: torch.randn(*s, dtype=torch.bfloat16) * 0.2)(D)),
        }
    _B_in = _B_setup()

    return {
        "A_x": _A_in["x"],
        "A_dft_seq_re": _A_in["dft_seq_re"],
        "A_dft_seq_im": _A_in["dft_seq_im"],
        "A_dft_hid_re": _A_in["dft_hid_re"],
        "A_dft_hid_im": _A_in["dft_hid_im"],
        "B_x": _B_in["x"],
        "B_w1": _B_in["w1"],
        "B_b1": _B_in["b1"],
        "B_w2": _B_in["w2"],
        "B_b2": _B_in["b2"],
    }

def reference(A_x, A_dft_seq_re, A_dft_seq_im, A_dft_hid_re, A_dft_hid_im, B_x, B_w1, B_b1, B_w2, B_b2):
    def _A_ref(x, dft_seq_re, dft_seq_im, dft_hid_re, dft_hid_im):
        a = torch.einsum("bsd,ed->bse", x, dft_hid_re)
        b = torch.einsum("bsd,ed->bse", x, dft_hid_im)
        y = torch.einsum("ts,bse->bte", dft_seq_re, a) - torch.einsum("ts,bse->bte", dft_seq_im, b)
        return y

    def _B_ref(x, w1, b1, w2, b2):
        h = torch.einsum("bsd,df->bsf", x, w1) + b1
        zero = torch.zeros_like(h)
        r = torch.where(h > zero, h, zero)
        h = r * r
        out = torch.einsum("bsf,fd->bsd", h, w2) + b2
        return out

    x = A_x
    h = x + _A_ref(_layernorm(x, axis=-1), A_dft_seq_re, A_dft_seq_im, A_dft_hid_re, A_dft_hid_im)
    h2 = h + _B_ref(_layernorm(h, axis=-1), B_w1, B_b1, B_w2, B_b2)
    return h2
```

```python
import re
from contextlib import contextmanager

REG_RE = re.compile(r'^(-|\|)?(abs\()?([vsa])(\d+|\[(\d+):(\d+)\])\)?\|?$')
def regs_of(tok):
    tok=tok.strip()
    if tok in ('vcc',): return {('s',106),('s',107)}
    if tok=='exec': return {('s',126),('s',127)}
    if tok=='exec_lo': return {('s',126)}
    if tok=='exec_hi': return {('s',127)}
    if tok=='m0': return {('s',124)}
    m=REG_RE.match(tok)
    if not m: return set()
    f=m.group(3)
    if m.group(5) is not None:
        return {(f,i) for i in range(int(m.group(5)),int(m.group(6))+1)}
    return {(f,int(m.group(4)))}

TRANS=('v_exp_f32','v_log_f32','v_rcp_f32','v_rsq_f32','v_sqrt_f32','v_sin_f32','v_cos_f32')

class Ins:
    def __init__(self,text):
        self.text=text
        t=text.split(';')[0].strip()
        parts=t.split(None,1)
        self.op=parts[0]
        rest=parts[1] if len(parts)>1 else ''
        ops=[]; depth=0; cur=''
        for ch in rest:
            if ch in '[(': depth+=1
            if ch in '])': depth-=1
            if ch==',' and depth==0: ops.append(cur.strip()); cur=''
            else: cur+=ch
        if cur.strip(): ops.append(cur.strip())
        self.mods=''
        if ops:
            last=ops[-1].split(None,1)
            ops[-1]=last[0]
            if len(last)>1: self.mods=last[1]
        self.ops=ops
        op=self.op
        R=[regs_of(o) for o in ops]
        self.w=set(); self.r=set()
        self.kind='other'
        self.A=self.B=self.C=set()
        U=lambda l: set().union(*l) if l else set()
        if op.startswith('v_mfma'):
            self.kind='mfma'; self.w=R[0]; self.A=R[1]; self.B=R[2]; self.C=R[3]; self.r=R[1]|R[2]|R[3]
            self.passes=2 if '4x4x4' in op else (8 if '32x32' in op else 4)
        elif op.startswith('v_'):
            self.kind='valu'
            if op.startswith('v_swap') or 'permlane' in op and 'swap' in op:
                self.w=R[0]|R[1]; self.r=R[0]|R[1]
            else:
                self.w=R[0]; self.r=U(R[1:])
                if op.startswith('v_fmac') or op.startswith('v_dot2c') or op.startswith('v_writelane') or 'dpp' in op or 'row_' in self.mods or 'quad_perm' in self.mods or 'UNUSED_PRESERVE' in self.mods:
                    self.r|=R[0]
                if op.startswith('v_cndmask') and len(ops)==3: self.r|=regs_of('vcc')
            if op.startswith('v_cmpx'): self.w|=regs_of('exec')
        elif op.startswith('ds_read') or op.startswith('ds_bpermute') or op.startswith('ds_swizzle'):
            self.kind='ds'; self.w=R[0]; self.r=U(R[1:])
        elif op.startswith('ds_'):
            self.kind='ds'; self.r=U(R)
        elif op.startswith('buffer_load') or op.startswith('global_load'):
            self.kind='vm'
            if re.search(r'\blds\b',self.mods) or '_lds_' in op:
                self.r=U(R)|regs_of('m0'); self.dma=True
            else:
                self.w=R[0]; self.r=U(R[1:])
        elif op.startswith('buffer_store') or op.startswith('global_store') or 'atomic' in op and not op.startswith('s_'):
            self.kind='vm'; self.r=U(R); self.store=True
            self.data=R[0] if op.startswith('buffer') else R[1]
        elif op.startswith('s_load') or op.startswith('s_buffer_load') or op.startswith('s_mem'):
            self.kind='smem'; self.w=R[0]; self.r=U(R[1:])
        elif op.startswith('s_cmp') or op.startswith('s_cbranch') or op in('s_branch','s_barrier','s_endpgm','s_nop','s_waitcnt','s_setprio','s_sleep') or op.startswith('s_bitcmp'):
            self.kind='salu'; self.r=U(R)
        elif op.startswith('s_'):
            self.kind='salu'; self.w=R[0]; self.r=U(R[1:])
            if 'saveexec' in op: self.w|=regs_of('exec'); self.r|=regs_of('exec')
            if op.startswith('s_addk') or op.startswith('s_mulk') or op.startswith('s_cmov'): self.r|=R[0]
        else:
            raise ValueError("unknown op "+text)
        self.dpp = self.kind=='valu' and ('dpp' in op or 'row_' in self.mods or 'quad_perm' in self.mods)
        self.trans = any(op.startswith(t) for t in TRANS)
        self.dot = op.startswith('v_dot')
        self.states = 1
        if op=='s_nop': self.states=int(ops[0],0)+1

def need(p,c):
    n=0
    vw={x for x in p.w if x[0] in 'va'}; sw={x for x in p.w if x[0]=='s'}
    if p.kind=='valu':
        if c.kind=='mfma' and vw&c.r: n=max(n,2)
        if c.kind=='mfma' and sw&regs_of('exec'): n=max(n,4)
        if c.dpp and vw&c.r: n=max(n,2)
        if c.dpp and sw&regs_of('exec'): n=max(n,5)
        if c.kind=='valu' and 'permlane' in c.op and vw&c.r: n=max(n,2)
        if c.kind=='valu' and (c.op.startswith('v_readfirstlane') or c.op.startswith('v_readlane')) and vw&c.r: n=max(n,1)
        if c.kind=='vm' and sw&c.r: n=max(n,5)
        if c.kind=='valu' and sw&c.r: n=max(n,4 if 'lane' in c.op else 2)
        if c.kind in('salu','smem') and sw&c.r: n=max(n,1)
        if p.trans and c.kind in('valu','mfma') and vw&c.r and not c.trans: n=max(n,1)
        if p.trans and c.kind in('ds','vm') and vw&c.r: n=max(n,1)
        if ('sdwa' in p.op or 'op_sel' in p.mods or 'dst_sel' in p.mods) and c.kind=='valu' and vw&(c.r|c.w): n=max(n,1)
        if p.dot:
            if c.op==p.op:
                srcab=set().union(*[regs_of(o) for o in c.ops[1:3]])
                if vw&srcab: n=max(n,3)
            elif vw&(c.r|c.w): n=max(n,3)
    if p.kind in('ds','vm') and c.dpp and vw&c.r: n=max(n,2)
    if p.kind=='mfma':
        P=p.passes
        big={2:5,4:8,8:12,16:20}[P]
        if c.kind=='mfma':
            if p.w&(c.A|c.B): n=max(n,big)
            if p.w&c.C:
                if p.w==c.C and c.passes==P: n=max(n,2 if P==2 else 0)
                else: n=max(n,{2:4,4:6,8:10,16:18}[P])
            if p.w&c.w and not (p.w==c.C): n=max(n,big)
        else:
            if p.w&(c.r|c.w): n=max(n,big)
            if c.kind=='valu' and p.C&c.w: n=max(n,{2:1,4:3,8:7,16:15}[P])
            if c.kind in('ds','vm') and p.C&c.w: n=max(n,{2:1,4:3,8:7,16:15}[P])
    if p.kind=='salu' and regs_of('m0')&p.w and getattr(c,'dma',False): n=max(n,1)
    if getattr(p,'store',False) and ('x4' in p.op or 'x3' in p.op) and p.data&c.w: n=max(n,2)
    if p.kind=='ds' and p.op.startswith('ds_write') and ('b128' in p.op or 'b96' in p.op) and c.kind=='valu' and p.r&c.w: n=max(n,2)
    return n

class Asm:
    def __init__(self):
        self.out=[]; self.hist=[]
        self.vm=[]; self.lg=[]
        self.nins=0; self.nops=0
    def raw(self,t): self.out.append(t)
    def comment(self,t): self.out.append('    ; '+t)
    def label(self,name,reset=True):
        self.out.append(name+':')
    def fence_hist(self):
        self._emit(Ins('s_nop 7')); self._emit(Ins('s_nop 3'))
    def _emit(self,ins):
        self.out.append('    '+ins.text); self.hist.append(ins); self.nins+=1
        if len(self.hist)>40: self.hist.pop(0)
    def _wait(self,vm=None,lg=None):
        s='s_waitcnt'
        if vm is not None: s+=f' vmcnt({vm})'
        if lg is not None: s+=f' lgkmcnt({lg})'
        self._emit(Ins(s))
    def _pop(self,q,idx,maxn,smem_any=False):
        n=sum(1 for e in q[idx+1:] if e[2])
        if smem_any: n=0
        if n>maxn: n=maxn
        keep=[]; c=0
        for e in reversed(q):
            if c<n:
                keep.append(e)
                if e[2]: c+=1
            else: break
        q[:]=list(reversed(keep))
        return n
    def I(self,text,tag=None):
        ins=Ins(text)
        touch=ins.r|ins.w
        vmw=lgw=None
        idx=max([i for i,e in enumerate(self.vm) if e[1]&touch],default=None)
        if idx is not None: vmw=self._pop(self.vm,idx,63)
        idx=max([i for i,e in enumerate(self.lg) if e[1]&touch],default=None)
        if idx is not None: lgw=self._pop(self.lg,idx,15,any(e[3] for e in self.lg))
        if vmw is not None or lgw is not None: self._wait(vmw,lgw)
        d=0; req=0
        for p in reversed(self.hist):
            n=need(p,ins)
            if n-d>req: req=n-d
            d+=p.states
            if d>=20: break
        while req>0:
            k=min(req,16); self._emit(Ins(f's_nop {k-1}')); self.nops+=1; req-=k
        self._emit(ins)
        if ins.kind=='vm': self.vm.append((tag,set(ins.w),True,False))
        elif ins.kind=='ds': self.lg.append((tag,set(ins.w),True,False))
        elif ins.kind=='smem': self.lg.append((tag,set(ins.w),True,True))
        if ins.op=='s_waitcnt': raise ValueError("use wait helpers")
    def wait_vm_tag(self,tag):
        idx=max([i for i,e in enumerate(self.vm) if e[0]==tag],default=None)
        if idx is None: return
        self._wait(vm=self._pop(self.vm,idx,63))
    def wait_vm0(self):
        self.vm=[]; self._wait(vm=0)
    def wait_lg0(self):
        self.lg=[]; self._wait(lg=0)
    def wait_all(self):
        self.vm=[]; self.lg=[]; self._wait(0,0)
    def snapshot(self): return (list(self.vm),list(self.lg),list(self.hist))
    def restore(self,s): self.vm,self.lg,self.hist=list(s[0]),list(s[1]),list(s[2])
    @contextmanager
    def cond(self):
        vm0,lg0=list(self.vm),list(self.lg); h0=list(self.hist)
        yield
        newvm=[e for e in self.vm if not any(e is x for x in vm0)]
        newlg=[e for e in self.lg if not any(e is x for x in lg0)]
        self.vm=vm0+[(e[0],e[1],False,e[3]) for e in newvm]
        self.lg=lg0+[(e[0],e[1],False,e[3]) for e in newlg]
        self.alt=h0
        d=0
        for p in reversed(h0):
            d+=p.states
            if d>=13: break
            if p.kind in('mfma',) or (p.kind=='valu' and d<6):
                q=Ins(p.text); q.states=0; self.hist.append(q)
    def text(self): return '\n'.join(self.out)+'\n'

class Regs:
    def __init__(self,prefix,start,limit):
        self.p=prefix; self.free=set(range(start,limit)); self.hi=start
    def get(self,n=1,align=None):
        if align is None: align=1 if n==1 else (2 if self.p=='v' else (2 if n==2 else 4))
        if self.p=='v' and n>=4 and align<2: align=2
        for b in sorted(self.free):
            if b%align==0 and all((b+i) in self.free for i in range(n)):
                for i in range(n): self.free.discard(b+i)
                self.hi=max(self.hi,b+n)
                return b
        raise RuntimeError(f"out of {self.p} regs (want {n})")
    def rel(self,b,n=1):
        for i in range(n):
            assert (b+i) not in self.free
            self.free.add(b+i)
def rng(p,b,n): return f'{p}{b}' if n==1 else f'{p}[{b}:{b+n-1}]'
def V(b,n=1): return rng('v',b,n)
def Sg(b,n=1): return rng('s',b,n)
```

```python
import sys, struct
from asmfw import *
from model import *

NAME="sequential_preLN__spectral_fnet__dense_activation_squared_relu__prompt"
def fbits(x): return "0x%08x"%struct.unpack('<I',struct.pack('<f',x))[0]

def srd(A,d,base,size,off=0):
    if off:
        A.I(f's_add_u32 s{d}, s{base}, {off}')
        A.I(f's_addc_u32 s{d+1}, s{base+1}, 0')
    else:
        A.I(f's_mov_b32 s{d}, s{base}')
        A.I(f's_mov_b32 s{d+1}, s{base+1}')
    A.I(f's_mov_b32 s{d+2}, {size}')
    A.I(f's_mov_b32 s{d+3}, 0x20000')

import os
STAMP=os.environ.get('STAMP','0')!='0'
STOP='s_memtime' if os.environ.get('STAMP')=='2' else 's_memrealtime'
OFF_DBG=20<<20
WS_REC=WS_END if not STAMP else (24<<20)
def stamp(A,k):
    if STAMP:
        A.I(f'{STOP} s[{60+2*k}:{61+2*k}]')
        A.wait_lg0()
def stamp_out(A,kid,srdb,sw,n,vt):
    if STAMP:
        A.I('s_mov_b64 exec, 1')
        A.I(f's_lshl_b32 s58, s2, 3')
        A.I(f's_add_u32 s58, s58, s{sw}')
        A.I(f's_lshl_b32 s58, s58, 6')
        A.I(f's_add_u32 s58, s58, {OFF_DBG+kid*256*8*64}')
        A.I(f'v_mov_b32 v{vt}, 0')
        for k in range(n):
            A.I(f'v_mov_b32 v{vt+1}, s{60+2*k}')
            A.I(f'buffer_store_dword v{vt+1}, v{vt}, s[{srdb}:{srdb+3}], s58 offen offset:{4*k}')
def kernel_head(A,name):
    A.raw(f'.globl {name}\n.p2align 8\n.type {name},@function\n{name}:')
def kernel_desc(name,nv,ns):
    acc=(nv+3)//4*4
    return f""".p2align 6
.amdhsa_kernel {name}
  .amdhsa_next_free_vgpr {nv}
  .amdhsa_next_free_sgpr {ns}
  .amdhsa_accum_offset {acc}
  .amdhsa_group_segment_fixed_size 0
  .amdhsa_kernarg_size 104
  .amdhsa_user_sgpr_count 2
  .amdhsa_user_sgpr_kernarg_segment_ptr 1
  .amdhsa_system_sgpr_workgroup_id_x 1
.end_amdhsa_kernel
"""

def rowbase(A,sd,sg,swt,st):
    A.I(f's_lshl_b32 s{st}, s{swt}, 9')
    A.I(f's_cmp_lt_u32 s{swt}, 2')
    A.I(f's_cselect_b32 s{sd}, 16, -1024')
    A.I(f's_cmp_eq_u32 s{sg}, 0')
    A.I(f's_cselect_b32 s{sd}, s{sd}, s{sg}')
    A.I(f's_add_u32 s{sd}, s{sd}, s{st}')

def side_fin(A):
    stamp(A,9)
    if STAMP:
        A.wait_vm0()
        for k in range(1,8): A.I(f's_mov_b32 s{60+2*k}, 0')
    stamp(A,10)
    stamp_out(A,0,24,28,11,28)
def gen_k1(A):
    name='k1_kernel'
    kernel_head(A,name)
    v=Regs('v',1,256)
    I=A.I
    I('s_cmp_ge_u32 s2, 256')
    I('s_cbranch_scc1 K1_END')
    stamp(A,0)
    I('s_load_dwordx2 s[4:5], s[0:1], 0')
    I('s_load_dwordx2 s[6:7], s[0:1], 48')
    I('s_load_dwordx2 s[8:9], s[0:1], 64')
    I('s_load_dwordx2 s[10:11], s[0:1], 96')
    lane=v.get(); t0=v.get(); t1=v.get(); t2=v.get(); t3=v.get()
    I(f'v_lshrrev_b32 v{t0}, 6, v0')
    I(f'v_and_b32 v{lane}, 63, v0')
    I(f'v_readfirstlane_b32 s28, v{t0}')
    I('s_and_b32 s29, s2, 7')
    I('s_lshr_b32 s30, s2, 3')
    srd(A,12,4,2048*1280)
    srd(A,16,6,640*3456)
    srd(A,20,8,1728*1280)
    srd(A,24,10,WS_REC)
    I('s_cmp_lt_u32 s30, 24')
    I('s_cbranch_scc1 K1_MAIN_A')
    I('s_cmp_ge_u32 s30, 30')
    I('s_cbranch_scc1 K1_SIDE')
    I('s_cmp_lg_u32 s29, 0')
    I('s_cbranch_scc1 K1_SIDE')
    snap=A.snapshot()
    I('s_mov_b32 s31, 32')
    I('s_sub_u32 s32, s30, 24')
    I('s_branch K1_MAIN')
    A.label('K1_MAIN_A')
    I('s_mul_i32 s33, s30, 43')
    I('s_lshr_b32 s33, s33, 8')
    I('s_lshl_b32 s31, s33, 3')
    I('s_add_u32 s31, s31, s29')
    I('s_mul_i32 s33, s33, 6')
    I('s_sub_u32 s32, s30, s33')
    A.label('K1_MAIN')
    xo=v.get()
    I(f'v_lshrrev_b32 v{t0}, 4, v{lane}')
    I('s_lshl_b32 s33, s28, 8')
    I('s_add_u32 s33, s33, s31')
    I(f'v_lshl_add_u32 v{t1}, v{t0}, 6, s33')
    I(f'v_sub_u32 v{t2}, 0x800, v{t1}')
    I(f'v_and_b32 v{t2}, 0x7ff, v{t2}')
    I(f'v_and_b32 v{t3}, 8, v{lane}')
    I(f'v_cmp_ne_u32 s[34:35], 0, v{t3}')
    I(f'v_cndmask_b32 v{t1}, v{t1}, v{t2}, s[34:35]')
    I(f'v_mul_u32_u24 v{t1}, 1280, v{t1}')
    I(f'v_and_b32 v{t3}, 7, v{lane}')
    I(f'v_lshl_add_u32 v{xo}, v{t3}, 4, v{t1}')
    raw=v.get(40,4)
    for i in range(5):
        I(f'buffer_load_dwordx4 {V(raw+8*i,4)}, v{xo}, s[12:15], 0 offen offset:{128*i}')
        I(f'buffer_load_dwordx4 {V(raw+8*i+4,4)}, v{xo}, s[12:15], 0 offen offset:{640+128*i}')
    I('s_cmp_ge_u32 s32, 3')
    I('s_cselect_b32 s36, 1, 0')
    I('s_mul_i32 s33, s36, 3')
    I('s_sub_u32 s33, s32, s33')
    I('s_mul_i32 s37, s33, 3')
    I('s_cmp_eq_u32 s33, 0')
    I('s_cselect_b32 s38, 4, 3')
    I('s_cselect_b32 s33, 0, 1')
    I('s_add_u32 s37, s37, s33')
    I('s_add_u32 s37, s37, s28')
    lw=v.get()
    I(f's_and_b32 s33, s28, 3')
    I(f's_lshl_b32 s33, s33, 2')
    I(f'v_add_u32 v{t2}, s33, v{t0}')
    I(f'v_xor_b32 v{t2}, v{t2}, v{t3}')
    I(f'v_lshlrev_b32 v{t2}, 4, v{t2}')
    I(f'v_lshl_add_u32 v{t2}, v{t3}, 8, v{t2}')
    I('s_lshr_b32 s33, s28, 2')
    I('s_mul_i32 s33, s33, 10240')
    I(f'v_mov_b32 v{t1}, 20480')
    I(f'v_cndmask_b32 v{t1}, 0, v{t1}, s[34:35]')
    I(f'v_add3_u32 v{lw}, v{t2}, v{t1}, s33')
    Wre=v.get(40,4); Wim=v.get(40,4); Cs=v.get(8,4); Sn=v.get(8,4); nSn=v.get(8,4)
    tmp=v.get(24,4)
    I('s_cmp_ge_u32 s28, s38')
    I('s_cbranch_scc1 K1_NOGEN')
    with A.cond():
        n16=t2; G=t0
        I(f'v_and_b32 v{n16}, 15, v{lane}')
        I('s_lshl_b32 s33, s37, 5')
        I('s_add_u32 s33, s33, s36')
        I(f'v_lshl_add_u32 v{t1}, v{n16}, 1, s33')
        I(f'v_mov_b32 v{t3}, 320')
        I(f'v_cmp_eq_u32 vcc, 0, v{t1}')
        I(f'v_cndmask_b32 v{t1}, v{t1}, v{t3}, vcc')
        I(f'v_cvt_f32_u32 v{t1}, v{t1}')
        step=v.get(); base=v.get()
        I(f'v_mul_f32 v{step}, {fbits(-1.0/640)}, v{t1}')
        I(f'v_lshlrev_b32 v{t3}, 3, v{G}')
        I(f'v_cvt_f32_u32 v{t3}, v{t3}')
        I(f'v_mul_f32 v{base}, v{step}, v{t3}')
        def gen8(dc,ds,offs,stp,bs):
            a=tmp; c=tmp+8; s=tmp+16
            for j in range(8):
                if offs[j]==0: I(f'v_mov_b32 v{a+j}, v{bs}')
                else: I(f'v_fmamk_f32 v{a+j}, v{stp}, {fbits(float(offs[j]))}, v{bs}')
            for j in range(8):
                I(f'v_cos_f32 v{c+j}, v{a+j}')
                I(f'v_sin_f32 v{s+j}, v{a+j}')
            for j in range(4):
                I(f'v_cvt_pk_f16_f32 v{dc+j}, v{c+2*j}, v{c+2*j+1}')
            for j in range(4):
                I(f'v_cvt_pk_f16_f32 v{ds+j}, v{s+2*j}, v{s+2*j+1}')
        for ks in range(10):
            gen8(Wre+4*ks,Wim+4*ks,[32*ks+j for j in range(8)],step,base)
        I(f'v_lshl_add_u32 v{t3}, v{G}, 8, s31')
        I(f'v_cvt_f32_u32 v{t3}, v{t3}')
        I(f'v_mul_f32 v{t3}, {fbits(1.0/64)}, v{t3}')
        for tt in range(2):
            I(f'v_add_u32 v{t1}, {16*tt}, v{n16}')
            I(f'v_cvt_f32_u32 v{t1}, v{t1}')
            I(f'v_mul_f32 v{step}, {fbits(1.0/32)}, v{t1}')
            I(f'v_mul_f32 v{base}, v{step}, v{t3}')
            gen8(Cs+4*tt,Sn+4*tt,[0,1,2,3,16,17,18,19],step,base)
            for j in range(4):
                I(f'v_xor_b32 v{nSn+4*tt+j}, 0x80008000, v{Sn+4*tt+j}')
        v.rel(step); v.rel(base)
    A.label('K1_NOGEN')
    stamp(A,1)
    u=v.get(40,4)
    I('s_mov_b32 s40, 0x3f803f80')
    I('s_lshl_b32 s41, s36, 15')
    I('s_or_b32 s41, s41, 0x3f80')
    I('s_lshl_b32 s42, s41, 16')
    I('s_cmp_eq_u32 s36, 0')
    I('s_cselect_b32 s43, -2.0, 0')
    sq=[tmp,tmp+1]; sm=[tmp+2,tmp+3]
    for r in sq+sm: I(f'v_mov_b32 v{r}, 0')
    for i in range(5):
        L=raw+8*i; H=L+4
        for d in range(4):
            I(f'v_lshlrev_b32 v{u+8*i+2*d}, 16, v{L+d}')
            I(f'v_and_b32 v{u+8*i+2*d+1}, 0xffff0000, v{L+d}')
        for d in range(4):
            I(f'v_dot2_f32_bf16 v{sq[0]}, v{L+d}, v{L+d}, v{sq[0]}')
            I(f'v_dot2_f32_bf16 v{sm[0]}, v{L+d}, s40, v{sm[0]}')
        for d in range(4):
            I(f'v_dot2_f32_bf16 v{u+8*i+2*d}, v{H+d}, s41, v{u+8*i+2*d}')
            I(f'v_dot2_f32_bf16 v{u+8*i+2*d+1}, v{H+d}, s42, v{u+8*i+2*d+1}')
            I(f'v_dot2_f32_bf16 v{sq[1]}, v{H+d}, v{H+d}, v{sq[1]}')
            I(f'v_dot2_f32_bf16 v{sm[1]}, v{H+d}, s40, v{sm[1]}')
    stamp(A,2)
    Q=tmp+4; M=tmp+5
    I(f'v_add_f32 v{Q}, v{sq[0]}, v{sq[1]}')
    I(f'v_add_f32 v{M}, v{sm[0]}, v{sm[1]}')
    for m in ('quad_perm:[1,0,3,2]','quad_perm:[2,3,0,1]','row_half_mirror'):
        I(f'v_add_f32_dpp v{Q}, v{Q}, v{Q} {m} row_mask:0xf bank_mask:0xf')
        I(f'v_add_f32_dpp v{M}, v{M}, v{M} {m} row_mask:0xf bank_mask:0xf')
    I(f'v_mul_f32 v{M}, {fbits(1.0/640)}, v{M}')
    I(f'v_mul_f32 v{Q}, {fbits(1.0/640)}, v{Q}')
    I(f'v_fma_f32 v{Q}, -v{M}, v{M}, v{Q}')
    I(f'v_max_f32 v{Q}, 0, v{Q}')
    I(f'v_add_f32 v{Q}, {fbits(1e-5)}, v{Q}')
    I(f'v_rsq_f32 v{Q}, v{Q}')
    a=tmp+6; b=tmp+7; c=tmp+8; mr=tmp+9
    I(f'v_mul_f32 v{mr}, v{M}, v{Q}')
    I(f'v_cndmask_b32 v{a}, v{Q}, -v{Q}, s[34:35]')
    I(f'v_mov_b32_dpp v{b}, v{Q} row_ror:8 row_mask:0xf bank_mask:0xf')
    I(f'v_mul_f32 v{c}, v{a}, v{M}')
    I(f'v_add_f32_dpp v{c}, v{mr}, v{c} row_ror:8 row_mask:0xf bank_mask:0xf')
    I(f'v_mul_f32 v{c}, s43, v{c}')
    o=raw
    for i in range(5):
        ob=o+8*(i%2)*2
        for j in range(8):
            I(f'v_fma_f32 v{ob+j}, v{a}, v{u+8*i+j}, v{c}')
        for j in range(8):
            I(f'v_fmac_f32_dpp v{ob+j}, v{u+8*i+j}, v{b} row_ror:8 row_mask:0xf bank_mask:0xf')
        for j in range(4):
            I(f'v_cvt_pk_f16_f32 v{ob+8+j}, v{ob+2*j}, v{ob+2*j+1}')
        I(f'ds_write_b128 v{lw}, {V(ob+8,4)} offset:{2048*i}')
    A.wait_lg0()
    stamp(A,3)
    I('s_barrier')
    stamp(A,4)
    I('s_cmp_ge_u32 s28, s38')
    I('s_cbranch_scc1 K1_END')
    ra=[tmp+10,tmp+11]
    I(f'v_and_b32 v{t2}, 15, v{lane}')
    I(f'v_lshrrev_b32 v{t0}, 4, v{lane}')
    I(f'v_xor_b32 v{t1}, v{t2}, v{t0}')
    I(f'v_lshlrev_b32 v{t1}, 4, v{t1}')
    I(f'v_lshl_add_u32 v{ra[0]}, v{t0}, 8, v{t1}')
    I(f'v_xor_b32 v{ra[1]}, 64, v{ra[0]}')
    ring=[raw+4*i for i in range(10)]+[u+4*i for i in range(10)]
    acc=v.get(16,4)
    seq=[(ks,m) for ks in range(10) for m in range(4)]
    def rd(idx):
        ks,m=seq[idx]
        off=(m>>1)*20480+(m&1)*10240+ks*1024
        I(f'ds_read_b128 {V(ring[idx%20],4)}, v{ra[ks&1]} offset:{off}')
    PF=12
    for idx in range(PF): rd(idx)
    so=tmp+12
    I(f'v_mul_u32_u24 v{so}, 40960, v{t2}')
    I(f'v_lshl_add_u32 v{so}, v{t0}, 4, v{so}')
    I('s_lshl_b32 s33, s37, 1')
    I('s_add_u32 s33, s33, s36')
    I('s_lshl_b32 s33, s33, 11')
    I('s_and_b32 s44, s31, 7')
    I('s_lshl_b32 s44, s44, 2')
    I('s_lshr_b32 s45, s31, 3')
    I('s_and_b32 s45, s45, 3')
    I('s_add_u32 s44, s44, s45')
    I('s_lshl_b32 s44, s44, 6')
    I('s_add_u32 s33, s33, s44')
    I(f's_add_u32 s46, s33, {OFF_U}')
    I(f's_add_u32 s47, s33, {OFF_U+16*40960}')
    for idx in range(40):
        ks,m=seq[idx]
        W=(Wre if m<2 else Wim)+4*ks
        Cc='0' if ks==0 else V(acc+4*m,4)
        I(f'v_mfma_f32_16x16x32_f16 {V(acc+4*m,4)}, {V(ring[idx%20],4)}, {V(W,4)}, {Cc}')
        if idx+PF<40: rd(idx+PF)
    Br=Wre; Bi=Wre+4
    for h in range(2):
        for d in range(2):
            I(f'v_cvt_pk_f16_f32 v{Br+2*h+d}, v{acc+4*h+2*d}, v{acc+4*h+2*d+1}')
    for h in range(2):
        for d in range(2):
            I(f'v_cvt_pk_f16_f32 v{Bi+2*h+d}, v{acc+8+4*h+2*d}, v{acc+8+4*h+2*d+1}')
    Uo=Wim
    for tt in range(2):
        I(f'v_mfma_f32_16x16x32_f16 {V(Uo+8*tt,4)}, {V(Br,4)}, {V(Cs+4*tt,4)}, 0')
        I(f'v_mfma_f32_16x16x32_f16 {V(Uo+8*tt+4,4)}, {V(Br,4)}, {V(nSn+4*tt,4)}, 0')
    for tt in range(2):
        I(f'v_mfma_f32_16x16x32_f16 {V(Uo+8*tt,4)}, {V(Bi,4)}, {V(Sn+4*tt,4)}, {V(Uo+8*tt,4)}')
        I(f'v_mfma_f32_16x16x32_f16 {V(Uo+8*tt+4,4)}, {V(Bi,4)}, {V(Cs+4*tt,4)}, {V(Uo+8*tt+4,4)}')
    P=Wim+16
    for tt in range(2):
        for d in range(4):
            I(f'v_cvt_pk_f16_f32 v{P+4*tt+d}, v{Uo+8*tt+2*d}, v{Uo+8*tt+2*d+1}')
    I('s_and_b32 s33, s31, 31')
    I('s_cmp_eq_u32 s33, 0')
    I('s_cbranch_scc1 K1_REONLY')
    I(f'buffer_store_dwordx4 {V(P,4)}, v{so}, s[24:27], s46 offen')
    I(f'buffer_store_dwordx4 {V(P+4,4)}, v{so}, s[24:27], s47 offen')
    stamp(A,5)
    if STAMP: A.wait_vm0()
    stamp(A,6)
    stamp_out(A,0,24,28,7,tmp)
    I('s_endpgm')
    A.label('K1_REONLY')
    I('s_lshr_b32 s33, s31, 2')
    I('s_add_u32 s46, s46, s33')
    I('s_add_u32 s47, s47, s33')
    I(f'buffer_store_dwordx2 {V(P,2)}, v{so}, s[24:27], s46 offen')
    I(f'buffer_store_dwordx2 {V(P+4,2)}, v{so}, s[24:27], s47 offen')
    I('s_endpgm')

    A.label('K1_SIDE')
    A.restore(snap); A.vm=[]; A.lg=[]
    I('s_cmp_ge_u32 s28, 6')
    I('s_cbranch_scc1 K1_END')
    I('s_sub_u32 s31, s30, 24')
    I('s_mul_i32 s32, s31, 7')
    I('s_add_u32 s32, s32, s29')
    I('s_sub_u32 s32, s32, 1')
    I('s_lshl_b32 s33, s31, 3')
    I('s_add_u32 s33, s33, s29')
    I('s_sub_u32 s33, s33, 6')
    I('s_cmp_lt_u32 s31, 6')
    I('s_cselect_b32 s32, s32, s33')
    I('s_mul_i32 s32, s32, 6')
    I('s_add_u32 s32, s32, s28')
    I('s_mul_i32 s34, s28, 20480')
    l16=10; vo=[11,12,13,14]; ta=[15,16,17,18]; tb=[19,20,21,22]; x0,x1,x2,x3=23,24,25,26
    fr=32
    I(f'v_lshlrev_b32 v{l16}, 4, v{lane}')
    I('s_cmp_ge_u32 s32, 344')
    I('s_cbranch_scc1 K1_END')
    I('s_cmp_lt_u32 s32, 108')
    I('s_cbranch_scc1 K1_W')
    I('s_cmp_ge_u32 s32, 236')
    I('s_cbranch_scc1 K1_W')
    snap2=A.snapshot()
    I('s_sub_u32 s32, s32, 108')
    I('s_lshr_b32 s35, s32, 3')
    I('s_and_b32 s36, s32, 3')
    I('s_bfe_u32 s37, s32, 0x10002')
    rowbase(A,38,35,36,39)
    I(f'v_lshrrev_b32 v{x0}, 4, v{lane}')
    I(f'v_and_b32 v{x1}, 15, v{lane}')
    I('s_cmp_eq_u32 s37, 1')
    I('s_cselect_b64 s[40:41], -1, 0')
    for r in range(4):
        I(f'v_add_u32 v{x2}, {4*r}, v{x0}')
        I(f'v_lshl_add_u32 v{x3}, v{x2}, 5, s38')
        I(f'v_sub_u32 v{vo[r]}, 0x800, v{x3}')
        I(f'v_cmp_eq_u32 vcc, 0, v{x3}')
        I(f'v_mov_b32 v{ta[0]}, 0x400')
        I(f'v_cndmask_b32 v{vo[r]}, v{vo[r]}, v{ta[0]}, vcc')
        I(f'v_cndmask_b32 v{x3}, v{x3}, v{vo[r]}, s[40:41]')
        I(f'v_mul_u32_u24 v{x3}, 1280, v{x3}')
        I(f'v_xor_b32 v{x2}, v{x2}, v{x1}')
        I(f'v_lshl_add_u32 v{vo[r]}, v{x2}, 4, v{x3}')
    for i in range(20):
        I(f's_add_u32 m0, s34, {1024*i}')
        I(f's_movk_i32 s42, {256*(i>>2)}')
        I(f'buffer_load_dwordx4 v{vo[i&3]}, s[12:15], s42 offen lds')
    I(f'v_lshl_add_u32 v{x2}, v{x1}, 8, s34')
    I(f'v_xor_b32 v{x3}, v{x0}, v{x1}')
    for r in range(4):
        I(f'v_xor_b32 v{ta[r]}, {4*r}, v{x3}')
        I(f'v_lshl_add_u32 v{ta[r]}, v{ta[r]}, 4, v{x2}')
        I(f'v_xor_b32 v{tb[r]}, {4*r+3}, v{x3}')
        I(f'v_lshl_add_u32 v{tb[r]}, v{tb[r]}, 4, v{x2}')
    I('s_lshl_b32 s43, s35, 2')
    I('s_add_u32 s43, s43, s36')
    I('s_mul_i32 s43, s43, 40960')
    I('s_lshl_b32 s44, s37, 11')
    I('s_add_u32 s43, s43, s44')
    I(f's_add_u32 s43, s43, {OFF_XP}')
    ex=27
    A.wait_vm0()
    stamp(A,8)
    for c in range(10):
        I(f'ds_read_b128 {V(fr+4*c,4)}, v{ta[c&3]} offset:{4096*(c>>2)}')
    for c in range(10):
        I(f's_add_u32 s44, s43, {4096*c}')
        I(f'buffer_store_dwordx4 {V(fr+4*c,4)}, v{l16}, s[24:27], s44 offen')
    fr2=fr+40
    for c in range(10):
        cp=19-c
        I(f'ds_read_b128 {V(fr2+4*c,4)}, v{tb[cp&3]} offset:{4096*(cp>>2)}')
        I(f'v_sub_u32 v{ex}, {80-4*c}, v{x0}')
        if c==0:
            I(f'v_cmp_eq_u32 vcc, 0, v{x0}')
            I(f'v_cndmask_b32 v{ex}, v{ex}, 40, vcc')
        I(f'v_and_b32 v{ex+1}, 15, v{ex}')
        I(f'v_xor_b32 v{ex+1}, v{ex+1}, v{x1}')
        I(f'v_lshl_add_u32 v{ex+1}, v{ex+1}, 4, v{x2}')
        I(f'v_lshrrev_b32 v{ex}, 4, v{ex}')
        I(f'v_lshl_add_u32 v{ex}, v{ex}, 12, v{ex+1}')
        I(f'ds_read_b32 v{120+c}, v{ex}')
    for c in range(10):
        b=fr2+4*c
        I(f'v_alignbit_b32 v{b}, v{b+1}, v{b}, 16')
        I(f'v_alignbit_b32 v{b+1}, v{b+2}, v{b+1}, 16')
        I(f'v_alignbit_b32 v{b+2}, v{b+3}, v{b+2}, 16')
        I(f'v_alignbit_b32 v{b+3}, v{120+c}, v{b+3}, 16')
        I(f's_add_u32 s44, s43, {4096*c+1024}')
        I(f'buffer_store_dwordx4 {V(b,4)}, v{l16}, s[24:27], s44 offen')
    side_fin(A)
    I('s_endpgm')
    A.label('K1_W')
    A.restore(snap2); A.vm=[]; A.lg=[]
    I(f'v_lshrrev_b32 v{x0}, 3, v{lane}')
    I(f'v_and_b32 v{x1}, 7, v{lane}')
    I(f'v_and_b32 v{x2}, 2, v{x0}')
    I(f'v_xor_b32 v{x1}, v{x1}, v{x2}')
    I(f'v_lshlrev_b32 v{x1}, 4, v{x1}')
    I(f'v_lshrrev_b32 v{x2}, 4, v{lane}')
    I(f'v_bfe_u32 v{x3}, v{lane}, 2, 2')
    I(f'v_lshl_add_u32 v{tb[0]}, v{x2}, 3, v{x3}')
    I(f'v_lshl_add_u32 v{tb[0]}, v{tb[0]}, 7, s34')
    I(f'v_and_b32 v{tb[1]}, 3, v{lane}')
    I(f'v_lshl_add_u32 v{tb[0]}, v{tb[1]}, 3, v{tb[0]}')
    I(f'v_lshrrev_b32 v{x3}, 1, v{x3}')
    I(f'v_and_b32 v{x2}, 1, v{x2}')
    I(f'v_lshl_or_b32 v{x3}, v{x2}, 1, v{x3}')
    for tt in range(4):
        I(f'v_xor_b32 v{ta[tt]}, {tt}, v{x3}')
        I(f'v_lshl_add_u32 v{ta[tt]}, v{ta[tt]}, 5, v{tb[0]}')
    I('s_cmp_ge_u32 s32, 236')
    I('s_cbranch_scc1 K1_W2')
    snap3=A.snapshot()
    def readout(dst_off,cs):
        A.wait_vm0()
        stamp(A,8)
        seq=[(a,tt) for a in range(5) for tt in range(4)]
        def rd(k):
            a,tt=seq[k]
            for h in range(2):
                I(f'ds_read_b64_tr_b16 {V(fr+4*k+2*h,2)}, v{ta[tt]} offset:{4096*a+512*h}')
        for k in range(6): rd(k)
        for k in range(20):
            a,tt=seq[k]
            I(f's_add_u32 s44, s43, {dst_off(a,tt)}')
            I(f'buffer_store_dwordx4 {V(fr+4*k,4)}, v{l16}, s[24:27], s44 offen')
            if cs is not None:
                I(f'v_mfma_f32_16x16x32_bf16 {V(cs+4*tt,4)}, {V(cs+16,4)}, {V(fr+4*k,4)}, {"0" if a==0 else V(cs+4*tt,4)}')
            if k+6<20: rd(k+6)
    I('s_lshr_b32 s35, s32, 2')
    I('s_and_b32 s36, s32, 1')
    I('s_bfe_u32 s37, s32, 0x10001')
    I(f'v_mul_u32_u24 v{x2}, 3456, v{x0}')
    I(f'v_add_u32 v{vo[0]}, v{x2}, v{x1}')
    I(f'v_xor_b32 v{x1}, 64, v{x1}')
    I(f'v_add_u32 v{vo[1]}, v{x2}, v{x1}')
    I('s_mul_i32 s38, s36, 160')
    I('s_sub_u32 s39, 633, s38')
    I('s_cmp_eq_u32 s37, 0')
    I('s_cselect_b32 s38, s38, s39')
    I('s_cselect_b32 s39, 1, -1')
    I(f's_mul_i32 s39, s39, {8*3456}')
    I('s_cmp_eq_u32 s38, 633')
    I(f's_cselect_b32 s40, {320*3456}, 0')
    I('s_mul_i32 s38, s38, 3456')
    I('s_lshl_b32 s41, s35, 7')
    I('s_add_u32 s38, s38, s41')
    I(f'v_add_u32 v{vo[2]}, s38, v{vo[0]}')
    I(f'v_subrev_u32 v{vo[3]}, s40, v{vo[2]}')
    I(f'v_cmp_eq_u32 vcc, 7, v{x0}')
    I(f'v_cndmask_b32 v{vo[2]}, v{vo[2]}, v{vo[3]}, vcc')
    for i in range(20):
        I(f's_add_u32 m0, s34, {1024*i}')
        if i==0:
            I(f'buffer_load_dwordx4 v{vo[2]}, s[16:19], 0 offen lds')
        else:
            I('s_add_u32 s38, s38, s39')
            I(f'buffer_load_dwordx4 v{vo[i&1]}, s[16:19], s38 offen lds')
    cs=120
    for r in range(4): I(f'v_mov_b32 v{cs+16+r}, 0x3f803f80')
    I(f's_mul_i32 s43, s35, {4*20480}')
    I(f's_mul_i32 s44, s36, {5*2048}')
    I('s_add_u32 s43, s43, s44')
    I('s_lshl_b32 s44, s37, 10')
    I('s_add_u32 s43, s43, s44')
    I(f's_add_u32 s43, s43, {OFF_W1P}')
    readout(lambda a,tt: tt*20480+a*2048, cs)
    I('s_lshl_b32 s43, s35, 10')
    I('s_and_b32 s44, s32, 3')
    I('s_lshl_b32 s44, s44, 2')
    I('s_add_u32 s43, s43, s44')
    I(f's_add_u32 s43, s43, {OFF_CSP}')
    I('s_mov_b64 exec, 0xffff')
    for tt in range(4):
        I(f'buffer_store_dword v{cs+4*tt}, v{l16}, s[24:27], s43 offen offset:{256*tt}')
    side_fin(A)
    I('s_endpgm')
    A.label('K1_W2')
    A.restore(snap3); A.vm=[]; A.lg=[]
    I('s_sub_u32 s32, s32, 236')
    I('s_lshr_b32 s35, s32, 1')
    I('s_and_b32 s36, s32, 1')
    I(f'v_and_b32 v{x2}, 4, v{x0}')
    I(f'v_mul_u32_u24 v{x2}, 3, v{x2}')
    I(f'v_add_u32 v{x2}, v{x2}, v{x0}')
    I(f'v_mul_u32_u24 v{x2}, 1280, v{x2}')
    I(f'v_add_u32 v{vo[0]}, v{x2}, v{x1}')
    I(f'v_xor_b32 v{x1}, 64, v{x1}')
    I(f'v_add_u32 v{vo[1]}, v{x2}, v{x1}')
    I(f's_mul_i32 s38, s35, {32*1280}')
    I('s_mul_i32 s39, s36, 640')
    I('s_add_u32 s38, s38, s39')
    for i in range(20):
        I(f's_add_u32 m0, s34, {1024*i}')
        I(f's_add_u32 s39, s38, {(i&3)*4*1280+(i>>2)*128}')
        I(f'buffer_load_dwordx4 v{vo[i&1]}, s[20:23], s39 offen lds')
    I(f's_mul_i32 s43, s36, {4*54*5120}')
    I('s_mul_i32 s44, s35, 5120')
    I('s_add_u32 s43, s43, s44')
    I(f's_add_u32 s43, s43, {OFF_W2P}')
    readout(lambda a,tt: ((4*a+tt)//5)*54*5120+((4*a+tt)%5)*1024, None)
    side_fin(A)
    A.label('K1_END')
    I('s_endpgm')
    return name, max(v.hi,144), 96

def build(kernels, path):
    body=''; descs=''; head=''
    for gen,grid,block,lds in kernels:
        A=Asm()
        name,nv,ns=gen(A)
        print(f'{name}: {A.nins} instrs, {A.nops} nops, vgpr {nv}')
        body+=A.text(); descs+=kernel_desc(name,nv,ns)
        head+=f'; @launch kernel={name} grid=({grid},1,1) block=({block},1,1) lds={lds}\n'
    s=head+'.amdgcn_target "amdgcn-amd-amdhsa--gfx950"\n.text\n'+body+'.section .rodata,"a"\n'+descs
    open(path,'w').write(s)

if __name__=='__main__':
    build([(gen_k1,256,512,122880)],'k.s')
```

```python
from gen import *

K2_WBASE=81920
K2_CONST=K2_WBASE+2*28672
K2_LDS=K2_CONST+1024

X=os.environ.get('X','')
def gen_k2(A):
    name='k2_kernel'
    kernel_head(A,name)
    v=Regs('v',1,256)
    I=A.I
    I('s_cmp_ge_u32 s2, 256')
    I('s_cbranch_scc1 K2_END')
    stamp(A,0)
    I('s_load_dwordx2 s[4:5], s[0:1], 56')
    I('s_load_dwordx2 s[6:7], s[0:1], 96')
    xh=v.get(80,4); acc=v.get(56,4); st=v.get(16,4); Wmr=v.get(16,4); ones=v.get(4,4); Z=v.get(16,4)
    ring=v.get(32,4); tmp=v.get(24,4)
    l16=v.get(); wv=[v.get() for _ in range(4)]; ua=[v.get(),v.get()]; wa=v.get()
    lane=tmp+20; n16=tmp+21; G=tmp+22; t0=tmp+23; t1=tmp+19; t2=tmp+18
    I(f'v_lshrrev_b32 v{t0}, 6, v0')
    I(f'v_and_b32 v{lane}, 63, v0')
    I(f'v_readfirstlane_b32 s16, v{t0}')
    I(f'v_lshlrev_b32 v{l16}, 4, v{lane}')
    I('s_and_b32 s17, s2, 7')
    I('s_lshr_b32 s18, s2, 3')
    I('s_lshr_b32 s19, s17, 1')
    I('s_lshl_b32 s19, s19, 2')
    I('s_lshr_b32 s20, s18, 3')
    I('s_add_u32 s19, s19, s20')
    I('s_and_b32 s20, s17, 1')
    I('s_lshl_b32 s20, s20, 3')
    I('s_and_b32 s21, s18, 7')
    I('s_add_u32 s20, s20, s21')
    I('s_and_b32 s21, s16, 3')
    I('s_lshr_b32 s22, s16, 2')
    I('s_sub_u32 s24, 32, s19')
    I('s_cmp_eq_u32 s19, 0')
    I('s_cselect_b32 s23, 16, s19')
    I('s_cselect_b32 s24, 0, s24')
    I('s_cmp_lt_u32 s21, 2')
    I('s_cselect_b32 s23, s23, s24')
    I('s_mul_i32 s23, s23, 40960')
    I('s_lshl_b32 s24, s22, 12')
    I('s_add_u32 s23, s23, s24')
    I('s_and_b32 s24, s21, 1')
    I('s_lshl_b32 s24, s24, 11')
    I('s_add_u32 s23, s23, s24')
    assert OFF_U==0
    I('s_lshl_b32 s24, s16, 11')
    I('s_lshl_b32 s25, s19, 2')
    I('s_add_u32 s25, s25, s21')
    I('s_mul_i32 s25, s25, 10')
    I('s_add_u32 s25, s25, s22')
    I('s_lshl_b32 s25, s25, 12')
    I(f's_add_u32 s25, s25, {OFF_XP}')
    I('s_lshl_b32 s27, s22, 11')
    I('s_sub_u32 s26, s25, s27')
    I('s_add_u32 s26, s26, 2048')
    I('s_add_u32 s25, s25, s27')
    srd(A,8,6,WS_REC)
    srd(A,12,4,1728*2)
    def ldU(i):
        I(f's_add_u32 m0, s24, {16384*i}')
        I(f's_add_u32 s40, s23, {8192*i}')
        I(f'buffer_load_dwordx4 v{l16}, s[8:11], s40 offen lds',tag=f'U{i}')
        I(f'buffer_load_dwordx4 v{l16}, s[8:11], s40 offen offset:1024 lds',tag=f'U{i}')
    def ldX(i):
        I(f's_add_u32 s40, s25, {8192*i}')
        I(f's_add_u32 s41, s26, {8192*i}')
        b=xh+16*i
        I(f'buffer_load_dwordx4 {V(b,4)}, v{l16}, s[8:11], s40 offen')
        I(f'buffer_load_dwordx4 {V(b+4,4)}, v{l16}, s[8:11], s41 offen')
        I(f'buffer_load_dwordx4 {V(b+8,4)}, v{l16}, s[8:11], s40 offen offset:1024')
        I(f'buffer_load_dwordx4 {V(b+12,4)}, v{l16}, s[8:11], s41 offen offset:1024')
    def ldW(i):
        I(f's_add_u32 m0, s30, {28672*(i&1)}')
        I(f's_add_u32 s40, s31, {4096*i}')
        for q in range(3):
            I(f'buffer_load_dwordx4 v{wv[q]}, s[8:11], s40 offen offset:{1024*q} lds',tag=f'W{i}')
        I('s_mov_b32 exec_hi, 0')
        I(f'buffer_load_dwordx4 v{wv[3]}, s[8:11], s40 offen offset:3072 lds',tag=f'W{i}')
        I('s_mov_b32 exec_hi, -1')
    ldU(0); ldX(0)
    I('s_mul_i32 s28, s20, 7')
    I('s_and_b32 s32, s20, 1')
    I('s_add_u32 s29, s28, 6')
    I('s_cmp_eq_u32 s32, 1')
    I('s_cselect_b32 s29, s28, s29')
    I('s_add_u32 s28, s28, s32')
    I('s_mul_i32 s32, s20, 6')
    I('s_add_u32 s32, s32, 12')
    I('s_cmp_ge_u32 s20, 12')
    I('s_cselect_b32 s28, s32, s28')
    I('s_cselect_b32 s29, s32, s29')
    I('s_mul_i32 s32, s21, 3584')
    I('s_mul_i32 s30, s22, 14336')
    I(f's_add_u32 s33, s30, {K2_WBASE}')
    I('s_add_u32 s30, s33, s32')
    I('s_lshl_b32 s31, s22, 11')
    I(f's_add_u32 s31, s31, {OFF_W1P}')
    I(f'v_add_u32 v{wa}, s33, v{l16}')
    I(f'v_mov_b32 v{t2}, s29')
    for q in range(4):
        I(f's_add_u32 s34, s32, {1024*q}')
        I(f'v_add_u32 v{t0}, s34, v{l16}')
        I(f'v_lshrrev_b32 v{t1}, 11, v{t0}')
        I(f'v_cmp_gt_u32 vcc, 6, v{t1}')
        I(f'v_add_u32 v{t1}, s28, v{t1}')
        I(f'v_cndmask_b32 v{t1}, v{t2}, v{t1}, vcc')
        I(f'v_mul_u32_u24 v{t1}, 20480, v{t1}')
        I(f'v_and_b32 v{t0}, 0x7ff, v{t0}')
        I(f'v_add_u32 v{wv[q]}, v{t0}, v{t1}')
        if q: I(f'v_subrev_u32 v{wv[q]}, {1024*q}, v{wv[q]}')
    I(f'v_and_b32 v{n16}, 15, v{lane}')
    I(f'v_lshrrev_b32 v{G}, 4, v{lane}')
    I('s_add_u32 s34, s28, s16')
    I('s_cmp_lt_u32 s16, 6')
    I('s_cselect_b32 s34, s34, s29')
    I('s_lshl_b32 s34, s34, 4')
    I(f'v_add_u32 v{t0}, s34, v{n16}')
    I(f'v_lshlrev_b32 v{t1}, 4, v{t0}')
    I(f'v_lshlrev_b32 v{t0}, 1, v{t0}')
    I(f's_mov_b32 s40, {OFF_CSP}')
    I(f'buffer_load_dwordx4 {V(acc,4)}, v{t1}, s[8:11], s40 offen')
    I(f'buffer_load_ushort v{acc+4}, v{t0}, s[12:15], 0 offen')
    I('s_min_u32 s34, s16, 6')
    I('s_lshl_b32 s34, s34, 6')
    I(f's_add_u32 s34, s34, {K2_CONST}')
    I(f'v_lshl_add_u32 v{acc+5}, v{n16}, 2, s34')
    I('s_barrier')
    ldW(0); ldU(1); ldX(1)
    I('s_lshr_b32 s35, s21, 1')
    I('s_cmp_eq_u32 s19, 0')
    I('s_cselect_b32 s36, s35, 0')
    I('s_cselect_b32 s37, s35, 1')
    I('s_lshl_b32 s38, s21, 4')
    I('s_lshl_b32 s39, s36, 5')
    I('s_sub_u32 s38, s38, s39')
    I('s_add_u32 s39, s36, 63')
    tA=tmp+16; tB=tmp+17
    I(f'v_add_u32 v{tA}, s38, v{n16}')
    I(f'v_sub_u32 v{tB}, s39, v{tA}')
    I(f'v_cmp_eq_u32 s[44:45], 64, v{tB}')
    I(f'v_cndmask_b32 v{tB}, v{tB}, 32, s[44:45]')
    I('s_cmp_eq_u32 s22, 1')
    I('s_cselect_b64 s[46:47], -1, 0')
    I('s_cselect_b32 s42, s37, s36')
    I('s_cselect_b32 s43, s36, s37')
    I('s_cselect_b64 s[48:49], 0, 0xffff')
    I(f'v_cndmask_b32 v{t0}, v{tA}, v{tB}, s[46:47]')
    I(f'v_cndmask_b32 v{tB}, v{tB}, v{tA}, s[46:47]')
    I(f'v_mov_b32 v{tA}, v{t0}')
    I(f'v_bfe_u32 v{t0}, v{lane}, 3, 1')
    I(f'v_lshl_add_u32 v{t0}, v{G}, 1, v{t0}')
    I(f'v_lshlrev_b32 v{t0}, 6, v{t0}')
    I(f'v_and_b32 v{t1}, 3, v{lane}')
    I(f'v_lshl_add_u32 v{t0}, v{t1}, 4, v{t0}')
    I(f'v_bfe_u32 v{t1}, v{lane}, 2, 1')
    I(f'v_lshl_add_u32 v{t0}, v{t1}, 3, v{t0}')
    I('s_lshl_b32 s34, s22, 13')
    I('s_lshl_b32 s42, s42, 12')
    I('s_lshl_b32 s43, s43, 12')
    I('s_add_u32 s42, s42, s34')
    I('s_add_u32 s43, s43, s34')
    I(f'v_add_u32 v{ua[0]}, s42, v{t0}')
    I(f'v_add_u32 v{ua[1]}, s43, v{t0}')
    I(f'v_lshrrev_b32 v{t0}, 1, v{G}')
    I(f'v_and_b32 v{t1}, 1, v{G}')
    I(f'v_lshl_add_u32 v{t0}, v{t1}, 4, v{t0}')
    I(f'v_cvt_f32_u32 v{t0}, v{t0}')
    I(f'v_cmp_gt_u32 vcc, 16, v{lane}')
    for s,tr in enumerate((tA,tB)):
        I(f'v_cvt_f32_u32 v{t1}, v{tr}')
        I(f'v_mul_f32 v{t1}, {fbits(1.0/64)}, v{t1}')
        I(f'v_mul_f32 v{t2}, v{t1}, v{t0}')
        a=tmp; c=Z; sn=Z+8
        for d in range(8):
            ks=d>>2; hh=(d>>1)&1; b=d&1
            qc=4*ks+2*hh+8*b
            if qc==0: I(f'v_mov_b32 v{a+d}, v{t2}')
            else: I(f'v_fmamk_f32 v{a+d}, v{t1}, {fbits(float(qc))}, v{t2}')
        for d in range(8):
            I(f'v_cos_f32 v{c+d}, v{a+d}')
            I(f'v_sin_f32 v{sn+d}, v{a+d}')
        for d in range(8):
            I(f'v_cvt_pk_f16_f32 v{Wmr+8*s+d}, v{c+d}, v{sn+d}')
        I(f'v_lshlrev_b32 v{tr}, 31, v{tr}')
        I(f'v_or_b32 v{tr}, 0x38003800, v{tr}')
        I(f'v_cndmask_b32 v{Wmr+8*s}, v{Wmr+8*s}, v{tr}, vcc')
    for r in range(4): I(f'v_mov_b32 v{ones+r}, 0x3f803f80')

    state={'slot':0}
    def rdU(i,side,par,ks):
        s=ring+4*(state['slot']%8); state['slot']+=1
        off=(16384*i)%65536+2048*par+1024*ks
        for h in range(2):
            if 'u' in X and i>0: continue
            I(f'ds_read_b64_tr_b16 {V(s+2*h,2)}, v{ua[side]} offset:{off+512*h}')
        return s
    def rdW(i,lt,fr):
        s=ring+4*(state['slot']%8); state['slot']+=1
        if 'w' not in X: I(f'ds_read_b128 {V(s,4)}, v{wa} offset:{28672*(i&1)+2048*lt+1024*fr}')
        return s
    ZT=lambda side,par: Z+8*side+4*par
    def vops(i):
        b=xh+16*i
        early=[]; lateF=[]; lateR=[]
        for s in range(2):
            for d in range(4):
                early.append(f'v_lshlrev_b32 v{tmp+8*s+2*d}, 16, v{b+4*s+d}')
                early.append(f'v_and_b32 v{tmp+8*s+2*d+1}, 0xffff0000, v{b+4*s+d}')
        for s in range(2):
            for d in range(4):
                if i==0 and d==0:
                    lateF.append(f'v_cndmask_b32 v{tmp+16}, v{ZT(s,0)}, 0, s[48:49]')
                    lateF.append(f'v_add_f32 v{tmp+8*s}, v{tmp+8*s}, v{tmp+16}')
                else:
                    lateF.append(f'v_add_f32 v{tmp+8*s+2*d}, v{tmp+8*s+2*d}, v{ZT(s,0)+d}')
                lateF.append(f'v_add_f32 v{tmp+8*s+2*d+1}, v{tmp+8*s+2*d+1}, v{ZT(s,1)+d}')
            for d in range(4):
                lateF.append(f'v_cvt_pk_bf16_f32 v{b+4*s+d}, v{tmp+8*s+2*d}, v{tmp+8*s+2*d+1}')
        for s in range(2):
            o=1-s
            for d in range(4):
                lateR.append(f'v_lshlrev_b32 v{tmp+8*s+2*d}, 16, v{b+8+4*s+d}')
                lateR.append(f'v_and_b32 v{tmp+8*s+2*d+1}, 0xffff0000, v{b+8+4*s+d}')
            for d in range(4):
                lateR.append(f'v_add_f32 v{tmp+8*s+2*d}, v{tmp+8*s+2*d}, v{ZT(o,1)+3-d}')
                lateR.append(f'v_add_f32 v{tmp+8*s+2*d+1}, v{tmp+8*s+2*d+1}, v{ZT(o,0)+3-d}')
            for d in range(4):
                lateR.append(f'v_cvt_pk_bf16_f32 v{b+8+4*s+d}, v{tmp+8*s+2*d}, v{tmp+8*s+2*d+1}')
        return early,lateF,lateR
    ool=[]
    def swap_point(i):
        I('s_cmp_lg_u64 s[44:45], 0')
        I(f's_cbranch_scc1 K2_SW{i}')
        A.label(f'K2_SWR{i}')
        ool.append(i)
    s2seq=[(s,p,ks) for ks in range(2) for s in range(2) for p in range(2)]
    def s2mfma(fr,s,p,ks):
        I(f'v_mfma_f32_16x16x32_f16 {V(ZT(s,p),4)}, {V(fr,4)}, {V(Wmr+8*s+4*ks,4)}, {"0" if ks==0 else V(ZT(s,p),4)}')
    stamp(A,1)
    A.wait_vm_tag('U0')
    I('s_barrier')
    stamp(A,2)
    frs=[rdU(0,*q) for q in s2seq[:7]]
    early,lateF,lateR=vops(0)
    for k,q in enumerate(s2seq):
        s2mfma(frs[k],*q)
        if k==0: frs.append(rdU(0,*s2seq[7]))
    for t in early: I(t)
    for t in lateF: I(t)
    swap_point(0)
    for t in lateR: I(t)
    I(f'v_add_f32 v{acc}, v{acc}, v{acc+1}')
    I(f'v_add_f32 v{acc+2}, v{acc+2}, v{acc+3}')
    I(f'v_lshlrev_b32 v{acc+4}, 16, v{acc+4}')
    I(f'v_add_f32 v{acc}, v{acc}, v{acc+2}')
    I(f'ds_write_b32 v{acc+5}, v{acc}')
    I(f'ds_write_b32 v{acc+5}, v{acc+4} offset:512')
    ldW(1); ldU(2); ldX(2)
    if 'p' in X:
        I('s_cmp_lt_u32 s16, 4')
        I('s_cbranch_scc1 K2_PRIO')
        I('s_setprio 1')
        A.label('K2_PRIO')
    for i in range(5):
        A.comment(f'phase {i}')
        A.wait_vm_tag(f'W{i}')
        if i<4: A.wait_vm_tag(f'U{i+1}')
        A.wait_lg0()
        if 'b' not in X or i==0: I('s_barrier')
        stamp(A,3+i)
        if i==3:
            I(f'v_add_u32 v{ua[0]}, 0x10000, v{ua[0]}')
            I(f'v_add_u32 v{ua[1]}, 0x10000, v{ua[1]}')
        b=xh+16*i
        hf=lambda s,fr: b+8*fr+4*s
        cons=[]
        if i<4: cons+=[('U',q) for q in s2seq]
        cons+=[('W',(lt,fr)) for lt in range(7) for fr in range(2)]
        regs={}
        nxt={'k':0}
        def prefetch():
            k=nxt['k']
            if k<len(cons):
                kind,q=cons[k]
                regs[k]=rdU(i+1,*q) if kind=='U' else rdW(i,*q)
                nxt['k']+=1
        for _ in range(7): prefetch()
        if i==1: ldW(2)
        if i==2: ldW(3)
        if i==3: ldW(4)
        mf=[]
        for fr in range(2):
            for s in range(2):
                first=(i==0 and fr==0)
                mf.append((lambda s=s,fr=fr,first=first: I(f'v_mfma_f32_16x16x32_bf16 {V(st+8*s,4)}, {V(ones,4)}, {V(hf(s,fr),4)}, {"0" if first else V(st+8*s,4)}'),None))
                mf.append((lambda s=s,fr=fr,first=first: I(f'v_mfma_f32_16x16x32_bf16 {V(st+8*s+4,4)}, {V(hf(s,fr),4)}, {V(hf(s,fr),4)}, {"0" if first else V(st+8*s+4,4)}'),None))
        for k,(kind,q) in enumerate(cons):
            if kind=='U':
                mf.append((lambda k=k,q=q: s2mfma(regs[k],*q),k))
            else:
                lt,fr=q
                first=(i==0 and fr==0)
                for s in range(2):
                    a=acc+28*s+4*lt
                    mf.append((lambda k=k,a=a,s=s,fr=fr,first=first: I(f'v_mfma_f32_16x16x32_bf16 {V(a,4)}, {V(regs[k],4)}, {V(hf(s,fr),4)}, {"0" if first else V(a,4)}'),k if s==1 else None))
        if i<4:
            early,lateF,lateR=vops(i+1)
            late=lateF+['SWAP']+lateR
        else: early=[];late=[]
        if 'v' in X: early=[];late=[]
        ne=0; nl=0
        for m,(fn,rel) in enumerate(mf):
            fn()
            if rel is not None: prefetch()
            if i<4:
                if 4<=m<16:
                    tgt=min(len(early),((m-3)*len(early)+11)//12)
                    while ne<tgt: I(early[ne]); ne+=1
                if m>=18:
                    tgt=min(len(late),((m-17)*len(late)+24)//25)
                    while nl<tgt:
                        if late[nl]=='SWAP': swap_point(i+1)
                        else: I(late[nl])
                        nl+=1
            if i==0 and m==20: ldU(3)
            if i==0 and m==30: ldX(3)
            if i==1 and m==20: ldU(4)
            if i==1 and m==30: ldX(4)
        assert ne==len(early) and nl==len(late)
    stamp(A,8)
    ex=tmp; px=tmp+1; dg=tmp+2; ca=tmp+3; ho=tmp+4; hq=tmp+5; n16=tmp+6; G=tmp+7; t0=tmp+8; t1=tmp+9
    I('s_mul_i32 s34, s16, 10240')
    I('s_xor_b32 s35, s16, 4')
    I('s_mul_i32 s35, s35, 10240')
    I(f'v_add_u32 v{ex}, s34, v{l16}')
    I(f'v_add_u32 v{px}, s35, v{l16}')
    I(f'v_bfe_u32 v{n16}, v{l16}, 4, 4')
    I(f'v_lshrrev_b32 v{G}, 8, v{l16}')
    I(f'ds_write_b128 v{ex}, {V(st+12,4)} offset:7168')
    I(f'ds_write_b128 v{ex}, {V(st+4,4)} offset:8192')
    I(f'ds_write_b32 v{ex}, v{st+8} offset:9216')
    for lt in range(7):
        I(f'ds_write_b128 v{ex}, {V(acc+28+4*lt,4)} offset:{1024*lt}')
    I(f'v_lshrrev_b32 v{t0}, 2, v{n16}')
    I(f'v_lshl_add_u32 v{t0}, v{t0}, 4, v{n16}')
    I(f'v_and_b32 v{t1}, 3, v{n16}')
    I(f'v_lshlrev_b32 v{t1}, 2, v{t1}')
    I(f'v_lshl_add_u32 v{dg}, v{t0}, 4, v{t1}')
    I(f'v_add_u32 v{t0}, s34, v{dg}')
    I(f'v_add_u32 v{dg}, s35, v{dg}')
    I(f'v_lshl_add_u32 v{ca}, v{G}, 4, 0')
    I(f'v_add_u32 v{ca}, {K2_CONST}, v{ca}')
    I('s_and_b32 s36, s20, 1')
    I('s_cmp_lg_u32 s36, s22')
    I('s_cbranch_scc1 K2_NOH')
    I('s_cmp_ge_u32 s20, 10')
    I('s_cbranch_scc1 K2_NOH')
    with A.cond():
        I('s_lshl_b32 s36, s19, 1')
        I('s_add_u32 s36, s36, s22')
        I('s_xor_b32 s37, s36, 1')
        I('s_lshl_b32 s38, s21, 4')
        I('s_lshl_b32 s36, s36, 6')
        I('s_lshl_b32 s37, s37, 6')
        I('s_add_u32 s36, s36, s38')
        I('s_add_u32 s37, s37, s38')
        I(f's_mul_i32 s36, s36, {HS*2}')
        I(f's_mul_i32 s37, s37, {HS*2}')
        I(f's_add_u32 s36, s36, {OFF_H}')
        I(f's_add_u32 s37, s37, {OFF_H}')
        I('s_lshl_b32 s38, s20, 6')
        I(f'v_mul_u32_u24 v{t1}, {HS*2}, v{n16}')
        I(f'v_lshl_add_u32 v{ho}, v{G}, 4, s38')
        I(f'v_sub_u32 v{hq}, 1266, v{ho}')
        I(f'v_add_u32 v{ho}, v{ho}, v{t1}')
        I(f'v_add_u32 v{hq}, v{hq}, v{t1}')
        I('s_lshr_b32 s38, s20, 1')
        for i in range(5):
            if i<4:
                I(f's_cmp_lg_u32 s38, {i}')
                I(f's_cbranch_scc1 K2_H{i+1}')
            b=xh+16*i
            I(f'buffer_store_dwordx4 {V(b,4)}, v{ho}, s[8:11], s36 offen')
            I(f'buffer_store_dwordx4 {V(b+4,4)}, v{ho}, s[8:11], s37 offen')
            I(f'buffer_store_dwordx4 {V(b+8,4)}, v{hq}, s[8:11], s36 offen')
            I(f'buffer_store_dwordx4 {V(b+12,4)}, v{hq}, s[8:11], s37 offen')
            if i==0:
                I('s_cmp_lg_u32 s20, 0')
                I('s_cbranch_scc1 K2_NOH')
                I('s_mov_b64 exec, 0xffff')
                I(f'buffer_store_short_d16_hi v{b+11}, v{t1}, s[8:11], s36 offen offset:640')
                I(f'buffer_store_short_d16_hi v{b+15}, v{t1}, s[8:11], s37 offen offset:640')
                I('s_mov_b64 exec, -1')
            if i<4:
                I('s_branch K2_NOH')
                A.label(f'K2_H{i+1}')
    A.label('K2_NOH')
    A.wait_lg0()
    I('s_barrier')
    stamp(A,9)
    q1=tmp+10; q2=tmp+11; sm=tmp+12
    I(f'ds_read_b32 v{q1}, v{t0} offset:8192')
    I(f'ds_read_b32 v{q2}, v{dg} offset:7168')
    I(f'ds_read_b32 v{sm}, v{px} offset:9216')
    pa=acc+28
    for lt in range(7):
        I(f'ds_read_b128 {V(pa+4*lt,4)}, v{px} offset:{1024*lt}')
    cb=ring
    def rdc(lt):
        I(f'ds_read_b128 {V(cb+8*(lt%4),4)}, v{ca} offset:{64*lt}')
        I(f'ds_read_b128 {V(cb+8*(lt%4)+4,4)}, v{ca} offset:{512+64*lt}')
    rdc(0); rdc(1)
    I('s_lshl_b32 s36, s19, 1')
    I('s_add_u32 s36, s36, s22')
    I('s_lshl_b32 s36, s36, 2')
    I('s_add_u32 s36, s36, s21')
    I('s_mul_i32 s36, s36, 54')
    I('s_lshr_b32 s37, s28, 1')
    I('s_add_u32 s37, s37, s36')
    I('s_lshl_b32 s37, s37, 10')
    I(f's_add_u32 s37, s37, {OFF_RP}')
    I('s_lshr_b32 s38, s29, 1')
    I('s_add_u32 s38, s38, s36')
    I('s_lshl_b32 s38, s38, 10')
    I('s_and_b32 s39, s29, 1')
    I('s_lshl_b32 s39, s39, 3')
    I('s_add_u32 s38, s38, s39')
    I(f's_add_u32 s38, s38, {OFF_RP}')
    I(f'v_add_f32 v{q1}, v{q1}, v{q2}')
    I(f'v_add_f32 v{sm}, v{sm}, v{st}')
    I(f'v_mul_f32 v{sm}, {fbits(-1.0/640)}, v{sm}')
    I(f'v_mul_f32 v{q1}, {fbits(1.0/640)}, v{q1}')
    I(f'v_fma_f32 v{q1}, -v{sm}, v{sm}, v{q1}')
    I(f'v_max_f32 v{q1}, 0, v{q1}')
    I(f'v_add_f32 v{q1}, {fbits(1e-5)}, v{q1}')
    I(f'v_rsq_f32 v{q1}, v{q1}')
    pk=Z
    for lt in range(7):
        if lt+2<7: rdc(lt+2)
        a=acc+4*lt; c=cb+8*(lt%4)
        for r in range(4): I(f'v_add_f32 v{a+r}, v{a+r}, v{pa+4*lt+r}')
        for r in range(4): I(f'v_fmac_f32 v{a+r}, v{sm}, v{c+r}')
        for r in range(4): I(f'v_fma_f32 v{a+r}, v{a+r}, v{q1}, v{c+4+r}')
        for r in range(4): I(f'v_max_f32 v{a+r}, 0, v{a+r}')
        for r in range(4): I(f'v_mul_f32 v{a+r}, v{a+r}, v{a+r}')
        for d in range(2): I(f'v_cvt_pk_bf16_f32 v{pk+2*lt+d}, v{a+2*d}, v{a+2*d+1}')
        if lt%2==1:
            I(f'buffer_store_dwordx4 {V(pk+2*lt-2,4)}, v{l16}, s[8:11], s37 offen offset:{1024*(lt//2)}')
    I('s_cmp_ge_u32 s20, 12')
    I('s_cbranch_scc1 K2_FIN')
    I(f'buffer_store_dwordx2 {V(pk+12,2)}, v{l16}, s[8:11], s38 offen')
    A.label('K2_FIN')
    stamp(A,10)
    if STAMP: A.wait_vm0()
    stamp(A,11)
    stamp_out(A,1,8,16,12,tmp)
    A.label('K2_END')
    I('s_endpgm')
    for i in ool:
        A.label(f'K2_SW{i}')
        A.hist=[]
        I('s_mov_b64 exec, s[44:45]')
        for r in range(8): I(f'v_swap_b32 v{Z+r}, v{Z+8+r}')
        I('s_mov_b64 exec, -1')
        I(f's_branch K2_SWR{i}')
    return name, v.hi, 96

if __name__=='__main__':
    build([(gen_k1,256,512,122880),(gen_k2,256,512,K2_LDS)],os.environ.get('OUT','k.s'))
```

```python
import numpy as np
S,D,F=2048,640,1728
HS=648
OFF_U   = 0
SZ_U    = 32*20*2048
OFF_XP  = OFF_U+SZ_U
SZ_XP   = 16*4*10*4*1024
OFF_W1P = OFF_XP+SZ_XP
SZ_W1P  = 108*20*1024
OFF_W2P = OFF_W1P+SZ_W1P
SZ_W2P  = 8*54*5*1024
OFF_CSP = OFF_W2P+SZ_W2P+8192
SZ_CSP  = 1728*16
OFF_H   = OFF_CSP+SZ_CSP
SZ_H    = 2048*HS*2
OFF_RP  = OFF_H+SZ_H
SZ_RP   = 128*54*1024
WS_END  = OFF_RP+SZ_RP

def bf16_round(a):
    a=np.ascontiguousarray(a,dtype=np.float32); u=a.view(np.uint32)
    r=((u+0x7fff+((u>>16)&1))>>16).astype(np.uint16)
    return r
def bf16_to_f32(u): return (u.astype(np.uint32)<<16).view(np.float32)
def bfr(a): return bf16_to_f32(bf16_round(a))

def pos_of_q(q): return (q&7)*4+(q>>3)
def q_of_pos(p): return (p>>2)+8*(p&3)
def e_of(c,p,i):
    e=32*c+2*i+p
    return 320 if e==0 else e
def rows(g,u):
    if g>=1: return g+32*u, 2048-(g+32*u), u, 63-u, g, 32-g, False
    if u<32: return 16+32*u, 16+32*(63-u), u, 63-u, 16, 16, False
    v=u-32
    if v==0: return 0,1024,0,32,0,0,True
    return 32*v, 2048-32*v, v, 64-v, 0, 0, False
def colF(c,G,j): return 32*c+8*G+j
def colR(c,G,j):
    col=640-32*c-8*G-7+j
    return 320 if col==640 else col
def f_of(kap,G,j): return 32*kap+4*G+j if j<4 else 32*kap+16+4*G+(j-4)

def ln(v):
    m=v.mean(-1,keepdims=True); var=v.var(-1,keepdims=True)
    return (v-m)/np.sqrt(var+1e-5)

def expected_U(x):
    xn=ln(x.astype(np.float64))
    A=np.fft.fft(xn,axis=1)
    B=A+np.conj(A[(-np.arange(S))%S])
    U=np.zeros((32,20,32,4,2,4))
    es=np.array([[e_of(t//2,t%2,i) for i in range(16)] for t in range(20)])
    t1=np.arange(32)[:,None]
    for q in range(33):
        s=64*np.arange(32)+q
        M=np.exp(-2j*np.pi*t1*s[None,:]/S)
        Uq=M@B[s][:,es.reshape(-1)]
        Uq=Uq.reshape(32,20,4,4)
        if q==0: U[:,:,0,:,0,:]=Uq.real
        elif q==32: U[:,:,0,:,1,:]=Uq.real
        else:
            U[:,:,pos_of_q(q),:,0,:]=Uq.real; U[:,:,pos_of_q(q),:,1,:]=Uq.imag
    return U
def Wm(t0):
    w=np.zeros((32,2))
    for p in range(32):
        q=q_of_pos(p)
        if q==0: w[p,0]=0.5; w[p,1]=0.5*(-1)**t0
        else: w[p,0]=np.cos(2*np.pi*t0*q/64); w[p,1]=np.sin(2*np.pi*t0*q/64)
    return w
_G,_n,_j=np.meshgrid(np.arange(4),np.arange(16),np.arange(8),indexing='ij')
def expected_XP(xb):
    XP=np.zeros((16,4,10,4,4,16,8),dtype=xb.dtype)
    cF=np.array([[[colF(c,G,j) for j in range(8)] for G in range(4)] for c in range(10)])
    cR=np.array([[[colR(c,G,j) for j in range(8)] for G in range(4)] for c in range(10)])
    for g in range(16):
        for u in range(64):
            rA,rB=rows(g,u)[:2]
            wt,n=u>>4,u&15
            XP[g,wt,:,0,:,n,:]=xb[rA][cF]; XP[g,wt,:,1,:,n,:]=xb[rA][cR]
            XP[g,wt,:,2,:,n,:]=xb[rB][cF]; XP[g,wt,:,3,:,n,:]=xb[rB][cR]
    return XP
def expected_W1P(w1b):
    cF=np.array([[[colF(c,G,j) for j in range(8)] for G in range(4)] for c in range(10)])
    cR=np.array([[[colR(c,G,j) for j in range(8)] for G in range(4)] for c in range(10)])
    k=np.stack([cF,cR],axis=1)
    W=w1b[k]
    W=W.reshape(10,2,4,8,108,16).transpose(4,0,1,2,5,3)
    return np.ascontiguousarray(W)
def expected_W2P(w2b):
    fk=np.array([[[f_of(k,G,j) for j in range(8)] for G in range(4)] for k in range(54)])
    W=w2b[fk]
    W=W.reshape(54,4,8,8,5,16).transpose(3,0,4,1,5,2)
    return np.ascontiguousarray(W)
def rowmap():
    rm=np.zeros(2048,dtype=np.int64)
    for g in range(16):
        for u in range(64):
            rA,rB=rows(g,u)[:2]
            rm[(g*2+0)*64+u]=rA; rm[(g*2+1)*64+u]=rB
    return rm
def h_from_U(U,x):
    H=np.zeros((2048,640))
    Um=U.transpose(0,1,3,5,2,4).reshape(32,20,16,64)
    for g in range(16):
        for u in range(64):
            rA,rB,tA,tB,gA,gB,sp=rows(g,u)
            ZA=Um[gA]@Wm(tA).reshape(64); ZB=Um[gB]@Wm(tB).reshape(64)
            zA=ZA.reshape(10,2,16).transpose(0,2,1).reshape(320); zB=ZB.reshape(10,2,16).transpose(0,2,1).reshape(320)
            fa=zA.copy(); fa[0]=0; fb=zB.copy(); fb[0]=0
            ra,rb=(zA,zB) if sp else (zB,zA)
            cols=640-np.arange(320); cols[0]=320
            hA=x[rA].astype(np.float64).copy(); hB=x[rB].astype(np.float64).copy()
            hA[:320]+=fa; hA[cols]+=ra; hB[:320]+=fb; hB[cols]+=rb
            H[(2*g)*64+u]=hA; H[(2*g+1)*64+u]=hB
    return H
def expected_RP(r):
    fk=np.array([[[f_of(k,G,j) for j in range(8)] for G in range(4)] for k in range(54)])
    R=r.reshape(128,16,1728)[:,:,fk]
    return np.ascontiguousarray(R.transpose(0,2,3,1,4))

if __name__=="__main__":
    rng=np.random.default_rng(0)
    x=bfr(rng.standard_normal((S,D))*0.05+0.01)
    U=expected_U(x)
    H=h_from_U(U,x)
    y=np.fft.fft2(ln(x.astype(np.float64))).real
    rm=rowmap()
    assert sorted(rm)==list(range(2048))
    print("h err",np.abs(H-(x+y)[rm]).max(), "U max",np.abs(U).max(), "ws end",WS_END)
```

```python
from gen2 import *

K3_NS=5
K3_STG=K3_NS*20480
K3_LDS=K3_STG+4*5376

def gen_k3(A):
    name='k3_kernel'
    kernel_head(A,name)
    v=Regs('v',1,256)
    I=A.I
    I('s_cmp_ge_u32 s2, 256')
    I('s_cbranch_scc1 K3_END')
    stamp(A,0)
    I('s_load_dwordx2 s[6:7], s[0:1], 96')
    I('s_load_dwordx4 s[16:19], s[0:1], 72')
    rr=v.get(16*K3_NS,4); acc=v.get(20,4); ring=v.get(40,4); hb=v.get(24,4); tmp=v.get(16,4)
    l16=v.get(); wl=v.get(); oo=[v.get() for _ in range(3)]; ra=[v.get() for _ in range(3)]
    t0=tmp; t1=tmp+1; t2=tmp+2; t3=tmp+3; lane=tmp+4
    I(f'v_lshrrev_b32 v{t0}, 6, v0')
    I(f'v_and_b32 v{lane}, 63, v0')
    I(f'v_readfirstlane_b32 s20, v{t0}')
    I(f'v_lshlrev_b32 v{l16}, 4, v{lane}')
    I('s_and_b32 s21, s2, 7')
    I('s_lshr_b32 s22, s2, 3')
    I('s_lshr_b32 s23, s21, 1')
    I('s_lshl_b32 s23, s23, 3')
    I('s_lshr_b32 s24, s22, 2')
    I('s_add_u32 s23, s23, s24')
    I('s_and_b32 s24, s21, 1')
    I('s_lshl_b32 s24, s24, 2')
    I('s_and_b32 s25, s22, 3')
    I('s_add_u32 s24, s24, s25')
    I(f's_mul_i32 s25, s24, {54*5120}')
    I('s_lshl_b32 s26, s20, 10')
    I('s_add_u32 s25, s25, s26')
    I(f's_add_u32 s25, s25, {OFF_W2P}')
    I('s_lshl_b32 s27, s23, 2')
    I('s_add_u32 s27, s27, s20')
    I(f's_mul_i32 s28, s27, {54*1024}')
    I(f's_add_u32 s28, s28, {OFF_RP}')
    srd(A,8,6,WS_REC)
    NST=14
    nk=lambda s: 4 if s<13 else 2
    def loads(s):
        L=[]
        np_=5 if s<13 else 3
        def dma(p):
            I(f's_add_u32 m0, s26, {20480*(s%K3_NS)+4096*p}')
            I(f's_add_u32 s40, s25, {20480*s+4096*p}')
            I(f'buffer_load_dwordx4 v{l16}, s[8:11], s40 offen lds',tag=f'W{s}')
        def rl(k):
            if k==0: I(f's_add_u32 s41, s28, {4096*s}')
            I(f'buffer_load_dwordx4 {V(rr+16*(s%K3_NS)+4*k,4)}, v{l16}, s[8:11], s41 offen offset:{1024*k}')
        for p in range(np_): L.append(lambda p=p: dma(p))
        for k in range(nk(s)): L.append(lambda k=k: rl(k))
        return L
    for f in loads(0): f()
    I('s_barrier')
    for f in loads(1): f()
    srd(A,12,16,1280)
    srd(A,32,18,2048*1280)
    I('s_lshr_b32 s29, s23, 1')
    I('s_and_b32 s30, s23, 1')
    rowbase(A,31,29,20,36)
    I('s_cmp_eq_u32 s30, 1')
    I('s_cselect_b64 s[38:39], -1, 0')
    I('s_mul_i32 s36, s24, 160')
    I(f's_mul_i32 s37, s27, {16*HS*2}')
    I('s_add_u32 s37, s37, s36')
    I(f's_add_u32 s37, s37, {OFF_H}')
    I('s_mul_i32 s42, s20, 5376')
    I(f's_add_u32 s42, s42, {K3_STG}')
    hv=[tmp+8,tmp+9,tmp+10]; bv=[tmp+11,tmp+12,tmp+13]
    for p in range(3):
        I(f'v_add_u32 v{t0}, {64*p}, v{lane}')
        if p==2: I(f'v_min_u32 v{t0}, 159, v{t0}')
        I(f'v_mul_u32_u24 v{t1}, 205, v{t0}')
        I(f'v_lshrrev_b32 v{t1}, 11, v{t1}')
        I(f'v_mul_u32_u24 v{t2}, 10, v{t1}')
        I(f'v_sub_u32 v{t0}, v{t0}, v{t2}')
        I(f'v_lshlrev_b32 v{bv[p]}, 4, v{t0}')
        I(f'v_mul_u32_u24 v{t2}, {HS*2}, v{t1}')
        I(f'v_add_u32 v{hv[p]}, v{t2}, v{bv[p]}')
        I(f'v_mul_u32_u24 v{t2}, 336, v{t1}')
        I(f'v_lshl_add_u32 v{t2}, v{t0}, 5, v{t2}')
        I(f'v_add_u32 v{ra[p]}, s42, v{t2}')
        I(f'v_lshl_add_u32 v{t2}, v{t1}, 5, s31')
        I(f'v_sub_u32 v{t3}, 0x800, v{t2}')
        I(f'v_cmp_eq_u32 vcc, 0, v{t2}')
        I(f'v_mov_b32 v{t1}, 0x400')
        I(f'v_cndmask_b32 v{t3}, v{t3}, v{t1}, vcc')
        I(f'v_cndmask_b32 v{t2}, v{t2}, v{t3}, s[38:39]')
        I(f'v_mul_u32_u24 v{t2}, 1280, v{t2}')
        I(f'v_add_u32 v{oo[p]}, v{t2}, v{bv[p]}')
    I(f'v_and_b32 v{t0}, 15, v{lane}')
    I(f'v_mul_u32_u24 v{t0}, 336, v{t0}')
    I(f'v_lshrrev_b32 v{t1}, 4, v{lane}')
    I(f'v_lshl_add_u32 v{t0}, v{t1}, 4, v{t0}')
    I(f'v_add_u32 v{wl}, s42, v{t0}')
    I('s_barrier')
    for f in loads(2): f()
    I('s_barrier')
    for f in loads(3): f()
    l16b=v.get()
    I(f'v_add_u32 v{l16b}, {3*20480}, v{l16}')
    stamp(A,1)
    slot={'n':0}
    for s in range(NST):
        A.wait_vm_tag(f'W{s}')
        A.wait_lg0()
        I('s_barrier')
        if s in (0,1,4,8,13): stamp(A,{0:2,1:3,4:4,8:5,13:6}[s])
        cons=[(k,t) for k in range(nk(s)) for t in range(5)]
        regs={}; nxt={'k':0}
        def prefetch():
            k=nxt['k']
            if k<len(cons):
                r=ring+4*(slot['n']%10); slot['n']+=1
                sl=s%K3_NS
                base,off=(l16,20480*sl) if sl<3 else (l16b,20480*(sl-3))
                I(f'ds_read_b128 {V(r,4)}, v{base} offset:{off+1024*k}')
                regs[k]=r; nxt['k']+=1
        for _ in range(9): prefetch()
        pend=loads(s+4) if s+4<NST else []
        if s==10:
            for p in range(3):
                pend.append(lambda p=p: I(f'buffer_load_dwordx4 {V(hb+8*p,4)}, v{hv[p]}, s[8:11], s37 offen'))
                pend.append(lambda p=p: I(f'buffer_load_dwordx4 {V(hb+8*p+4,4)}, v{bv[p]}, s[12:15], s36 offen'))
        for m,(k,t) in enumerate(cons):
            first=(s==0 and k==0)
            I(f'v_mfma_f32_16x16x32_bf16 {V(acc+4*t,4)}, {V(regs[m],4)}, {V(rr+16*(s%K3_NS)+4*k,4)}, {"0" if first else V(acc+4*t,4)}')
            prefetch()
            if m%2==1 and pend: pend.pop(0)()
        for f in pend: f()
    stamp(A,7)
    for t in range(5):
        I(f'ds_write_b128 v{wl}, {V(acc+4*t,4)} offset:{64*t}')
    A.wait_lg0()
    for p in range(3):
        I(f'ds_read_b128 {V(ring+8*p,4)}, v{ra[p]}')
        I(f'ds_read_b128 {V(ring+8*p+4,4)}, v{ra[p]} offset:16')
    u=rr
    for p in range(3):
        for d in range(4):
            I(f'v_lshlrev_b32 v{u+16*p+2*d}, 16, v{hb+8*p+d}')
            I(f'v_and_b32 v{u+16*p+2*d+1}, 0xffff0000, v{hb+8*p+d}')
            I(f'v_lshlrev_b32 v{u+16*p+8+2*d}, 16, v{hb+8*p+4+d}')
            I(f'v_and_b32 v{u+16*p+8+2*d+1}, 0xffff0000, v{hb+8*p+4+d}')
        for j in range(8): I(f'v_add_f32 v{u+16*p+j}, v{u+16*p+j}, v{u+16*p+8+j}')
    for p in range(3):
        for j in range(8): I(f'v_add_f32 v{u+16*p+j}, v{u+16*p+j}, v{ring+8*p+j}')
        for d in range(4): I(f'v_cvt_pk_bf16_f32 v{u+16*p+8+d}, v{u+16*p+2*d}, v{u+16*p+2*d+1}')
        if p==2: I('s_mov_b32 exec_hi, 0')
        I(f'buffer_store_dwordx4 {V(u+16*p+8,4)}, v{oo[p]}, s[32:35], s36 offen')
    stamp(A,8)
    if STAMP: A.wait_vm0()
    stamp(A,9)
    stamp_out(A,2,8,20,10,tmp)
    A.label('K3_END')
    I('s_endpgm')
    return name, v.hi, 96

if __name__=='__main__':
    build([(gen_k1,256,512,122880),(gen_k2,256,512,K2_LDS),(gen_k3,256,256,K3_LDS)],os.environ.get('OUT','k.s'))
```
